```python
import torch

def _softmax(x, axis=-1):
    return torch.softmax(x, dim=axis)

def _gelu(x):
    return torch.nn.functional.gelu(x, approximate='tanh')

def _silu(x):
    return torch.nn.functional.silu(x)

def _sigmoid(x):
    return torch.sigmoid(x)

def _layernorm(x, axis=-1, eps=1e-05):
    m = x.mean(dim=axis, keepdim=True)
    v = x.var(dim=axis, keepdim=True, unbiased=False)
    return (x - m) / torch.sqrt(v + eps)

def _scatter_add(tgt, idx, src, axis=0):
    return tgt.clone().index_add_(axis, idx, src)

def _segment_sum(src, seg, n):
    out = torch.zeros((n,) + src.shape[1:], dtype=src.dtype)
    return out.index_add_(0, seg, src)

def _pad(x, pw):
    flat = tuple((v for pair in reversed(pw) for v in pair))
    return torch.nn.functional.pad(x, flat)
kernel_name = 'standalone__swin_window_attn__vision'

def setup_inputs():

    _w = lambda a: (lambda t: t.to(torch.bfloat16) if t.is_floating_point() else t)(torch.as_tensor(a))
    H = W = 512 // 8 * 8
    C, win = (192, 8)
    return {'x': _w((lambda *s: torch.randn(*s, dtype=torch.bfloat16) * 0.2)(1, H, W, C)), 'wqkv': _w((lambda *s: torch.randn(*s, dtype=torch.bfloat16) * 0.2)(C, 3 * C)), 'wo': _w((lambda *s: torch.randn(*s, dtype=torch.bfloat16) * 0.05)(C, C))}

def reference(x, wqkv, wo):
    B, H, W, C = x.shape
    win = 8
    nh, nw = (H // win, W // win)
    xw = (lambda x, *d: x.permute(*d))(x.reshape(B, nh, win, nw, win, C), 0, 1, 3, 2, 4, 5)
    xw = xw.reshape(B * nh * nw, win * win, C)
    qkv = xw @ wqkv
    q, k, v = (qkv[..., :C].clone(), qkv[..., C:2 * C].clone(), qkv[..., 2 * C:].clone())
    scale = C ** (-0.5)
    p = _softmax(torch.einsum('bqc,bkc->bqk', q, k) * scale, axis=-1)
    o = torch.einsum('bqk,bkc->bqc', p, v) @ wo
    o = (lambda x, *d: x.permute(*d))(o.reshape(B, nh, nw, win, win, C), 0, 1, 3, 2, 4, 5)
    return o.reshape(B, H, W, C)
```

```python
import re

def regs(kind, base, n=1):
    return [(kind, base + i) for i in range(n)]
def V(b, n=1): return regs('v', b, n)
def A(b, n=1): return regs('a', b, n)
def S(b, n=1): return regs('s', b, n)

def rtxt(kind, base, n=1):
    if n == 1: return "%s%d" % (kind, base)
    return "%s[%d:%d]" % (kind, base, base + n - 1)

COST = dict(label=0, bar=12, mfma=8, valu=4, trans=8, perm=4, dsr=4, dsw=20, vld=4, vst=20, vst1=12, salu=4, dma=20, wait=4, nop=4, br=4)
MEMK = ('dsr', 'dsw', 'vld', 'vst', 'vst1', 'dma')
MEM_MFMA_GAP = 8

class Op:
    __slots__ = ("text", "kind", "reads", "writes", "cost", "idx", "preds", "succs", "alap", "asap", "pin",
                 "deadline", "earliest", "emitted", "t", "tag", "creads", "passes", "grp", "req", "lat", "emi")
    def __init__(self, text, kind, reads=(), writes=(), deadline=None, earliest=None, tag="", creads=(), passes=8):
        self.text = text; self.kind = kind
        self.reads = list(reads); self.writes = list(writes)
        self.creads = list(creads)
        self.cost = COST[kind]
        self.preds = []; self.succs = []
        self.deadline = deadline; self.earliest = earliest
        self.pin = None; self.emitted = False; self.t = None; self.tag = tag
        self.passes = passes
        self.grp = 'cur'; self.req = None; self.lat = None; self.emi = 0
    def __repr__(self): return self.text

def raw_latency(p, c):
    if p.lat is not None: return p.lat
    if p.kind == 'mfma':
        if c.kind == 'mfma' and set(c.creads) & set(p.writes) and not (set(c.reads) - set(c.creads)) & set(p.writes):
            return 0
        return p.passes * 4 + 40
    if p.kind == 'dsr': return 140
    if p.kind == 'vld': return 4000
    if p.kind == 'dma': return 1200 if c.kind == 'bar' else 4
    if p.kind == 'trans': return 12
    if p.kind in ('valu', 'perm'):
        if c.kind == 'mfma' or c.kind == 'perm': return 12
        return 4
    return 4

def build_dag(ops):
    last_w = {}; readers = {}
    for i, o in enumerate(ops):
        o.idx = i; o.preds = []; o.succs = []
    def edge(p, c, lat):
        if p is c: return
        c.preds.append((p, lat)); p.succs.append((c, lat))
    for o in ops:
        for r in o.reads:
            if r in last_w: edge(last_w[r], o, raw_latency(last_w[r], o))
        for r in o.writes:
            if r in last_w:
                p = last_w[r]
                lat = 4
                if p.kind == 'mfma' and o.kind != 'mfma': lat = p.passes * 4 + 40
                if p.kind == 'mfma' and o.kind == 'mfma': lat = 0 if r in o.creads else p.passes*4+16
                if p.kind in ('dsr', 'vld'): lat = raw_latency(p, o)
                edge(p, o, lat)
            for q in readers.get(r, []):
                lat = 4
                if q.kind == 'mfma': lat = 8
                if q.kind == 'vld' and False: lat = 4
                edge(q, o, lat)
        for r in o.reads:
            readers.setdefault(r, []).append(o)
        for r in o.writes:
            last_w[r] = o; readers[r] = []
    return ops

def schedule(ops, mfma_period=32, budget=24, verbose=False, horizon=None, merge_slack=220, mem_bias=400, urgent=300, dsw_gap=56, vst_gap=60, vst1_gap=28, lds_queue=40, slack=0, short=False):
    build_dag(ops)
    mf = [o for o in ops if o.kind == 'mfma']
    for i, o in enumerate(mf): o.pin = i * mfma_period
    end = len(mf) * mfma_period if horizon is None else horizon
    for o in reversed(ops):
        if o.kind == 'mfma':
            o.alap = o.pin; continue
        a = end + 10000
        for (c, lat) in o.succs:
            a = min(a, c.alap - max(lat, o.cost))
        if o.deadline is not None: a = min(a, o.deadline)
        o.alap = a
    out = []
    t = 0
    ready_t = {}
    npred = {id(o): len(o.preds) for o in ops}
    avail = [o for o in ops if not o.preds and o.kind != 'mfma']
    def rt(o):
        r = 0
        for (p, lat) in o.preds: r = max(r, p.t + lat)
        if o.earliest is not None: r = max(r, o.earliest)
        return r
    hs = State()
    pend = {}
    res = dict(dsw=-999, vst=-999, lds=0)
    def res_ok(o, tt):
        if o.kind == 'dsw' and tt < res['dsw'] + dsw_gap: return False
        if o.kind == 'vst' and tt < res['vst'] + vst_gap: return False
        if o.kind == 'vst1' and tt < res['vst'] + vst1_gap: return False
        if o.kind in ('dsr', 'dsw') and res['lds'] - tt > lds_queue: return False
        return True
    def res_upd(o, tt):
        if o.kind == 'dsw': res['dsw'] = tt
        if o.kind in ('vst', 'vst1'): res['vst'] = tt
        if o.kind in ('dsr', 'dsw'): res['lds'] = max(res['lds'], tt) + (16 if o.kind == 'dsr' else 40)
    def extra(o):
        return 4 if any(r in pend for r in o.reads + o.writes) else 0
    def emit(o, tt):
        o.t = tt; o.emitted = True; out.append(o)
        track(hs, o); res_upd(o, tt)
        hit = [pend[r] for r in o.reads + o.writes if r in pend]
        if hit:
            tmax = max(max(hit), tt - merge_slack)
            for r in [r for r, x in pend.items() if x <= tmax]: del pend[r]
        if o.kind == 'dsr':
            for r in o.writes: pend[r] = tt
        for (c, lat) in o.succs:
            npred[id(c)] -= 1
            if npred[id(c)] == 0 and c.kind != 'mfma': avail.append(c)
    def force(o):
        nonlocal t
        need = []
        seen = set()
        def rec(x):
            for (p, lat) in x.preds:
                if not p.emitted and id(p) not in seen:
                    seen.add(id(p)); rec(p); need.append(p)
        rec(o)
        need.sort(key=lambda x: x.idx)
        for p in need:
            assert p.kind != 'mfma', ("backbone order violates deps", o.text, p.text)
            tt = max(t, rt(p)) if False else t
            if p in avail: avail.remove(p)
            tt = max(t, rt(p))
            emit(p, tt); t = tt + p.cost
            stats['forced'] += 1
    stats = dict(forced=0, stall=0)
    pipe_free = 0
    for mi, m in enumerate(mf):
        force(m)
        tt = max(t, pipe_free, rt(m))
        if tt > max(t, pipe_free): stats['stall'] += tt - max(t, pipe_free)
        if tt > pipe_free and mi > 0: stats.setdefault('late', []).append((mi, tt - pipe_free, m.tag))
        emit(m, tt)
        t = tt + m.cost
        pipe_free = tt + m.passes * 4
        nxt = mf[mi + 1] if mi + 1 < len(mf) else None
        limit = pipe_free + slack
        if nxt is not None and any(r in pend for r in nxt.reads): limit -= 4
        while True:
            ok = [o for o in avail if rt(o) <= t and o.emi <= mi and need_states(hs, o) <= 0 and res_ok(o, t)]
            if short:
                mem = [o for o in ok if o.kind in MEMK and t <= tt + m.cost + (4 if False else 0) and (limit == pipe_free + slack or o.cost > 4 or True)]
            else:
                mem = [o for o in ok if o.kind in MEMK and t + o.cost + (4 if o.kind in ('dsw', 'vst', 'dma') else MEM_MFMA_GAP) <= limit + (4 if o.kind in ('dsw', 'vst', 'dma') and t == tt + m.cost else 0)]
            oth = [o for o in ok if o.kind not in MEMK and t + o.cost + extra(o) <= limit]
            mem.sort(key=lambda o: (o.alap, o.idx)); oth.sort(key=lambda o: (o.alap, o.idx))
            pick = None
            if mem and (not oth or mem[0].alap <= oth[0].alap + mem_bias or mem[0].alap <= t + urgent): pick = mem[0]
            elif oth: pick = oth[0]
            elif mem: pick = mem[0]
            if pick is None: break
            avail.remove(pick)
            c = extra(pick)
            emit(pick, t + c); t += pick.cost + c
    while avail:
        avail.sort(key=lambda o: (o.alap, o.idx))
        o = avail.pop(0)
        tt = max(t, rt(o)); emit(o, tt); t = tt + o.cost
    assert all(o.emitted for o in ops), [o.text for o in ops if not o.emitted][:5]
    stats['end'] = t; stats['pipe_end'] = pipe_free
    return out, stats

VALU_KINDS = ('valu', 'trans', 'perm')

class State:
    def __init__(self):
        self.pos = 0
        self.lastw = {}
        self.cread = {}
        self.lgkm = []
        self.vm = []
        self.pend = {}
        self.time = 0
        self.seq = 0
        self.mfree = -100
        self.moff = 0

MFMA_STATES = 7
def need_states(st, o):
    return _need_states(st, o)

def mpos_of(st, o):
    m = st.pos + st.moff
    if o.kind == 'mfma': m = max(m, st.mfree)
    return m

def advance_mfma(st, o):
    if o.kind == 'mfma':
        m = mpos_of(st, o); st.moff = m - st.pos; st.mfree = m + (o.passes - 1)

def _need_states(st, o):
    need = 0
    def req(r, n, table=None):
        nonlocal need
        e = (table or st.lastw).get(r)
        return e
    for r in o.reads:
        e = st.lastw.get(r)
        if e is None: continue
        pos, p, mp = e
        dist = (mpos_of(st, o) - mp - 1) if p.kind == 'mfma' else (st.pos - pos - 1)
        n = 0
        if p.kind == 'mfma':
            if o.kind == 'mfma':
                if r in o.creads and not (r in [x for x in o.reads if x not in o.creads]):
                    same = (p.writes == o.creads)
                    n = 0 if same else p.passes + 2
                else:
                    n = p.passes + 4
            else:
                n = p.passes + 4
        elif p.kind in VALU_KINDS:
            if r[0] in ('v', 'a'):
                if o.kind == 'mfma': n = 2
                elif o.kind == 'perm': n = 2
                elif p.kind == 'trans' and o.kind != 'trans': n = 1
                elif p.kind == 'trans': n = 1
                if 'readlane' in o.text or 'readfirstlane' in o.text: n = max(n, 1)
                if 'dpp' in o.text or 'quad_perm' in o.text or 'row_' in o.text: n = max(n, 2)
            else:
                if o.kind in ('vld', 'vst', 'vst1', 'dma'): n = 5
                elif o.kind in VALU_KINDS: n = 2
                else: n = 2
        elif p.kind == 'salu':
            if r == 'm0' and o.kind in ('dma',): n = 1
        need = max(need, n - dist)
    for r in o.writes:
        e = st.lastw.get(r)
        if e is not None:
            pos, p, mp = e
            dist = (mpos_of(st, o) - mp - 1) if p.kind == 'mfma' else (st.pos - pos - 1)
            if p.kind == 'mfma' and not (o.kind == 'mfma' and r in o.creads and p.writes == o.creads):
                if o.kind == 'mfma':
                    n = p.passes + 2
                else:
                    n = p.passes + 4
                need = max(need, n - dist)
        e = st.cread.get(r)
        if e is not None and o.kind != 'mfma':
            pos, p, mp = e
            dist = mpos_of(st, o) - mp - 1
            need = max(need, (p.passes - 1) - dist)
        e = st.lastw.get(('stdata', r))
        if e is not None:
            pos, p, mp = e
            dist = st.pos - pos - 1
            need = max(need, 2 - dist)
    return need

def track(st, o):
    advance_mfma(st, o)
    mp = st.pos + st.moff
    for r in o.writes:
        if o.kind in ('dsr', 'vld'): st.lastw.pop(r, None)
        else: st.lastw[r] = (st.pos, o, mp)
        st.cread.pop(r, None)
    if o.kind == 'mfma':
        for r in o.creads: st.cread[r] = (st.pos, o, mp)
    st.pos += 1

def finalize(seq, st=None, tbase=0, merge_slack=220, vm_slack=3000, reqs=None, collect=None):
    if st is None: st = State()
    lines = []
    def younger(q, sq):
        for k, e_ in enumerate(q):
            if e_[0] == sq: return len(q) - 1 - k
        return None
    for i, o in enumerate(seq):
        if o.t is not None: st.time = max(st.time, tbase + o.t)
        needl = None; needv = None
        for r in list(o.reads) + list(o.writes):
            e = st.pend.get(r)
            if e is None: continue
            cnt, sq = e
            k = younger(st.lgkm if cnt == 'lgkm' else st.vm, sq)
            if k is None: continue
            if cnt == 'lgkm': needl = k if needl is None else min(needl, k)
            else: needv = k if needv is None else min(needv, k)
        if needl is not None:
            q = st.lgkm; k = needl
            while k > 0:
                cand = q[len(q) - k]
                if cand[1] + merge_slack <= st.time: k -= 1
                else: break
            needl = min(k, 15)
        if needv is not None:
            q = st.vm; k = needv
            while k > 0:
                cand = q[len(q) - k]
                if cand[2] == 'vld' and cand[1] + vm_slack <= st.time: k -= 1
                else: break
            needv = min(k, 63)
        rn = 0
        if reqs is not None:
            rv, rl, rn = reqs[i]
            if rv is not None: needv = rv if needv is None else min(needv, rv)
            if rl is not None: needl = rl if needl is None else min(needl, rl)
        if needl is not None or needv is not None:
            parts = []
            if needv is not None:
                parts.append("vmcnt(%d)" % needv)
                st.vm = st.vm[max(0, len(st.vm) - needv):] if needv > 0 else []
            if needl is not None:
                parts.append("lgkmcnt(%d)" % needl)
                st.lgkm = st.lgkm[max(0, len(st.lgkm) - needl):] if needl > 0 else []
            lines.append("    s_waitcnt " + " ".join(parts))
            st.pos += 1; st.time += 4
        k = max(need_states(st, o), rn - (1 if (needl is not None or needv is not None) else 0) * 0)
        if collect is not None: collect.append((needv, needl, k))
        while k > 0:
            m = min(k, 16)
            lines.append("    s_nop %d" % (m - 1))
            st.pos += m; st.time += 4 * m; k -= m
        if o.kind == 'label':
            lines.append(o.text); continue
        lines.append("    " + o.text + (("    ; " + o.tag) if o.tag else ""))
        st.seq += 1
        advance_mfma(st, o)
        mp = st.pos + st.moff
        for r in o.writes:
            st.pend.pop(r, None)
            if (o.kind in ('dsr', 'vld', 'dma') and isinstance(r, tuple)) or (o.kind == 'dsw' and isinstance(r, tuple) and r[0] == 'IMG'):
                st.pend[r] = ('lgkm' if o.kind in ('dsr', 'dsw') else 'vm', st.seq)
                st.lastw.pop(r, None)
            else:
                st.lastw[r] = (st.pos, o, mp)
            st.cread.pop(r, None)
        if o.kind == 'mfma':
            for r in o.creads: st.cread[r] = (st.pos, o, mp)
        if o.kind == 'vst' and ('dwordx4' in o.text or 'dwordx3' in o.text):
            for r in o.reads: st.lastw[('stdata', r)] = (st.pos, o, mp)
        if o.kind in ('dsr', 'dsw'): st.lgkm.append((st.seq, st.time))
        if o.kind in ('vld', 'vst', 'vst1', 'dma'):
            st.vm.append((st.seq, st.time, o.kind)); st.maxvm = max(getattr(st, 'maxvm', 0), len(st.vm))
        if o.kind in ('dsr', 'dsw'): st.maxlg = max(getattr(st, 'maxlg', 0), len(st.lgkm))
        if o.text.startswith("s_waitcnt"):
            m = re.search(r"vmcnt\((\d+)\)", o.text)
            if m:
                k = int(m.group(1)); st.vm = st.vm[max(0, len(st.vm) - k):] if k > 0 else []
            m = re.search(r"lgkmcnt\((\d+)\)", o.text)
            if m:
                k = int(m.group(1)); st.lgkm = st.lgkm[max(0, len(st.lgkm) - k):] if k > 0 else []
        n = 1
        m = re.match(r"s_nop (\d+)", o.text)
        if m: n = int(m.group(1)) + 1
        st.pos += n; st.time += o.cost
    return lines

def merge_reqs(a, b):
    out = []
    for (v1, l1, n1), (v2, l2, n2) in zip(a, b):
        mn = lambda x, y: x if y is None else (y if x is None else min(x, y))
        out.append((mn(v1, v2), mn(l1, l2), max(n1, n2)))
    return out
```

```python
import sys, struct, math, argparse
sys.path.insert(0, "gen")
from sched import *

NAME = "standalone__swin_window_attn__vision"
DELTA = 25165824
XBYTES = 100663296
ROWB = 196608
WIMG = 147456
KAPPA = (192 ** -0.5) * math.log2(math.e)
NM = 768
P = 16
def f32hex(x): return "0x%08x" % struct.unpack("<I", struct.pack("<f", x))[0]

HEADER = """; Kernarg layout for this problem (48 bytes, ptrs only, base s[0:1]):
"""

def prep_kernel(stamp=False):
    L = []
    a = L.append
    a(".globl swin_prep_kernel\n.p2align 8\n.type swin_prep_kernel,@function\nswin_prep_kernel:")
    a("""    s_cmp_ge_u32 s2, 144
    s_cbranch_scc1 L_prep_end
    s_load_dwordx4 s[4:7], s[0:1], 8
    s_load_dwordx2 s[8:9], s[0:1], 40""")
    if stamp: a("    s_memrealtime s[36:37]")
    a("""    v_and_b32 v1, 15, v0              ; i
    v_lshrrev_b32 v2, 4, v0           ; g
    v_lshrrev_b32 v3, 2, v1
    v_lshlrev_b32 v3, 3, v3
    v_and_b32 v4, 3, v1
    v_add_u32 v3, v3, v4              ; 8*(i>>2) + (i&3)
    s_cmp_ge_u32 s2, 72
    s_cselect_b32 s20, 1, 0           ; isN
    s_cselect_b32 s21, 72, 0
    s_sub_u32 s21, s2, s21            ; z
    s_mul_i32 s22, s21, 43
    s_lshr_b32 s22, s22, 8            ; z / 6  (cb or b'')
    s_mul_i32 s23, s22, 6
    s_sub_u32 s23, s21, s23           ; s
    s_waitcnt lgkmcnt(0)
    s_mov_b32 s12, s4
    s_mov_b32 s13, s5
    s_mov_b32 s14, 221184
    s_mov_b32 s15, 0x00020000
    s_mov_b32 s16, s6
    s_mov_b32 s17, s7
    s_mov_b32 s18, 73728
    s_mov_b32 s19, 0x00020000
    s_mov_b32 s24, s8
    s_mov_b32 s25, s9
    s_mov_b32 s26, %d
    s_mov_b32 s27, 0x00020000
    ; A rows: c = 32 s + 8*(i>>2) + (i&3) + 4*hh'  ; byte = c*1152 + 16 g + (isN ? 768 : 0)
    s_lshl_b32 s28, s23, 5
    v_add_u32 v6, s28, v3
    s_movk_i32 s29, 1152
    v_mul_lo_u32 v6, v6, s29
    v_lshl_add_u32 v6, v2, 4, v6
    s_mul_i32 s30, s20, 768
    v_add_u32 v6, s30, v6
    v_add_u32 v7, 4608, v6            ; hh' = 1 : +4 rows""" % WIMG)
    for km in range(6):
        a("    buffer_load_dwordx4 v[%d:%d], v6, s[12:15], 0 offen offset:%d" % (16 + 4 * km, 19 + 4 * km, 64 * km))
        a("    buffer_load_dwordx4 v[%d:%d], v7, s[12:15], 0 offen offset:%d" % (40 + 4 * km, 43 + 4 * km, 64 * km))
    a("    s_cmp_eq_u32 s20, 1")
    a("    s_cbranch_scc1 L_prep_N")
    a("""    s_lshr_b32 s28, s22, 1
    s_lshl_b32 s28, s28, 5
    s_and_b32 s31, s22, 1
    s_lshl_b32 s31, s31, 2
    s_add_u32 s28, s28, s31
    v_add_u32 v8, s28, v3
    v_mul_lo_u32 v8, v8, s29
    v_lshl_add_u32 v8, v2, 4, v8""")
    for km in range(6):
        a("    buffer_load_dwordx4 v[%d:%d], v8, s[12:15], 0 offen offset:%d" % (64 + 4 * km, 67 + 4 * km, 384 + 64 * km))
    a("""    s_lshl_b32 s28, s21, 10           ; fragment z
    v_lshlrev_b32 v9, 4, v0
    s_branch L_prep_mm
L_prep_N:
    v_lshrrev_b32 v8, 1, v0
    v_mul_u32_u24 v8, 384, v8
    v_and_b32 v9, 1, v0
    v_lshl_add_u32 v8, v9, 4, v8
    s_lshl_b32 s28, s22, 5""")
    for j in range(6):
        a("    s_mov_b32 m0, %d" % (j * 1024))
        a("    s_add_u32 s34, s28, %d" % (j * 12288))
        a("    buffer_load_dwordx4 v8, s[16:19], s34 offen lds")
    a("""    v_lshlrev_b32 v8, 3, v2           ; 8 g
    v_lshrrev_b32 v9, 2, v0
    v_and_b32 v9, 3, v9
    v_add_u32 v8, v8, v9
    v_lshlrev_b32 v8, 5, v8           ; row*32
    v_and_b32 v10, 3, v0
    v_lshl_add_u32 v8, v10, 3, v8
    s_waitcnt vmcnt(0)""")
    for km in range(6):
        for q in range(2):
            a("    ds_read_b64_tr_b16 v[%d:%d], v8 offset:%d" % (64 + 4 * km + 2 * q, 65 + 4 * km + 2 * q, (32 * km + 4 * q) * 32))
    a("""    v_and_b32 v9, 3, v1
    v_mul_u32_u24 v9, 6144, v9
    v_lshlrev_b32 v10, 8, v2
    v_lshrrev_b32 v11, 2, v1
    v_lshlrev_b32 v11, 4, v11
    v_add3_u32 v9, v9, v10, v11
    s_lshr_b32 s28, s22, 2
    s_mul_i32 s28, s28, 24576
    s_and_b32 s33, s22, 3
    s_lshl_b32 s33, s33, 6
    s_add_u32 s28, s28, s33
    s_lshl_b32 s33, s23, 10
    s_add_u32 s28, s28, s33
    s_add_u32 s28, s28, 73728
    s_waitcnt lgkmcnt(0)
L_prep_mm:
    s_waitcnt vmcnt(0)""")
    for km in range(6):
        for t in range(2):
            d = 112 + 4 * t
            c = "0" if km == 0 else "v[%d:%d]" % (d, d + 3)
            a("    v_mfma_f32_16x16x32_bf16 v[%d:%d], v[%d:%d], v[%d:%d], %s" % (d, d + 3, 16 + 24 * t + 4 * km, 19 + 24 * t + 4 * km, 64 + 4 * km, 67 + 4 * km, c))
    a("    s_nop 15")
    for j in range(4):
        a("    v_cvt_pk_bf16_f32 v%d, v%d, v%d" % (128 + j, 112 + 2 * j, 113 + 2 * j))
    a("    buffer_store_dwordx4 v[128:131], v9, s[24:27], s28 offen")
    if stamp:
        a("    s_waitcnt vmcnt(0)")
        a("    s_memrealtime s[38:39]")
        a("    s_waitcnt lgkmcnt(0)")
        a("    s_add_u32 s24, s8, 0x180000\n    s_addc_u32 s25, s9, 0\n    s_mov_b32 s26, 4096")
        a("    v_mov_b32 v20, s36\n    v_mov_b32 v21, s37\n    v_mov_b32 v22, s38\n    v_mov_b32 v23, s39")
        a("    s_lshl_b32 s28, s2, 4\n    v_mov_b32 v24, s28")
        a("    s_mov_b64 exec, 1")
        a("    buffer_store_dwordx4 v[20:23], v24, s[24:27], 0 offen")
    a("L_prep_end:")
    a("    s_endpgm")
    return "\n".join(L) + "\n"

PREP_DESC = """.amdhsa_kernel swin_prep_kernel
  .amdhsa_next_free_vgpr 136
  .amdhsa_next_free_sgpr 40
  .amdhsa_accum_offset 136
  .amdhsa_group_segment_fixed_size 0
  .amdhsa_kernarg_size 48
  .amdhsa_user_sgpr_count 2
  .amdhsa_user_sgpr_kernarg_segment_ptr 1
  .amdhsa_system_sgpr_workgroup_id_x 1
.end_amdhsa_kernel
"""

vWB = [1, 2, 3]; vSTW = 4; vSTR = [5, 6]; vLD = 9; vSTO = 11
vMX = [12, 13, 14, 15]; vTM = [16, 17]; vSM = [20, 21, 22, 23]; vT2 = [24, 25]
def vS(kb, tb): return 32 + tb * 16 + kb * 4
def vP(tb, v): return 32 + tb * 8 + v * 4
def vACC(h, i): return 96 + h * 16 + i * 4
def vVB(cb, v): return 128 + cb * 8 + v * 4
def vYB(tb): return 208 + tb * 4
def vO(st, q): return (64, 80, 96, 112)[st] + q * 4
def vH(m, tb): return (224, 128, 160)[m] + tb * 8
def aXF(par, tb, s): return par * 96 + (tb * 6 + s) * 4
def aWR(k): return 192 + (k % 16) * 4
sX = 8; sOUT = 12; sLD = 24; sST = 32; sCNT = 48; sWAVE = 49; sKAP = 40; sOUTP = 16; sSTP = 52
STAGE0 = WIMG

class Cfg:
    ldflag = " nt"; stflag = " nt"; wlead = 20; stamp = False; ld0 = 676; ldstep = 58.0
    R = 368; exit_tau = 672
    st0 = (1240, 750, 1010); ststep = (12, 16, 14)
    stage0 = True
    stg0 = 590; nosets = 4; oset0 = 0
    hd_pre = 3; hd_lead = 88; hd_m = (0, 0, 0, 92, 104, 116); hd_n0 = 128; hd_nstep = 12; hd_x0 = 110; hd_xstep = 15

def stamp(a, idx, rt=False):
    a("    %s s[62:63]" % ("s_memrealtime" if rt else "s_memtime"))
    a("    s_waitcnt lgkmcnt(0)")
    a("    v_mov_b32 v26, s62\n    v_mov_b32 v27, s63\n    v_mov_b32 v28, s98")
    a("    s_mov_b64 exec, 1")
    a("    buffer_store_dwordx2 v[26:27], v28, s[68:71], 0 offen offset:%d" % (idx * 8))
    a("    s_mov_b64 exec, -1")

def mfma(d, a_kind, a, b_kind, b, first, tag=""):
    c = "0" if first else rtxt('v', d, 4)
    cr = [] if first else V(d, 4)
    return Op("v_mfma_f32_16x16x32_bf16 %s, %s, %s, %s" % (rtxt('v', d, 4), rtxt(a_kind, a, 4), rtxt(b_kind, b, 4), c),
              'mfma', reads=regs(a_kind, a, 4) + regs(b_kind, b, 4) + cr, writes=V(d, 4), creads=cr, tag=tag, passes=4)

def wread(k, **kw):
    off = (k % 144) * 1024
    base = vWB[off // 65536]
    return Op("ds_read_b128 %s, v%d offset:%d" % (rtxt('a', aWR(k), 4), base, off % 65536), 'dsr',
              reads=V(base), writes=A(aWR(k), 4), tag="W%d" % (k % 144), **kw)

def cvt(dst, s0, s1, **kw):
    return Op("v_cvt_pk_bf16_f32 v%d, v%d, v%d" % (dst, s0, s1), 'valu', reads=V(s0) + V(s1), writes=V(dst), **kw)

def xload(par, tb, s, cfg, **kw):
    d = aXF(par, tb, s)
    return Op("buffer_load_dwordx4 %s, v%d, s[%d:%d], s%d offen offset:%d%s" %
              (rtxt('a', d, 4), vLD, sX, sX + 3, sLD + 2 * tb, 64 * s, cfg.ldflag), 'vld',
              reads=V(vLD) + S(sX, 4) + S(sLD + 2 * tb), writes=A(d, 4), **kw)
XPAIRS = [(tb, m) for m in range(3) for tb in range(4)]

vSTW = 4; vSTR = [5, 6]; vLDC = 10
def aRAW(t, m, r): return 96 + ((m * 2 + t) * 4 + r) * 4
def xload_c(t, m, r, cfg):
    rho = 4 * t + r
    return Op("buffer_load_dwordx4 %s, v%d, s[%d:%d], s%d offen offset:%d%s" %
              (rtxt('a', aRAW(t, m, r), 4), vLDC, sX, sX + 3, sLD + rho, 128 * m, cfg.ldflag), 'vld',
              reads=V(vLDC) + S(sX, 4) + S(sLD + rho), writes=A(aRAW(t, m, r), 4))
def staging(t, m):
    o = []
    for r in range(4):
        o.append(Op("ds_write_b128 v%d, %s offset:%d" % (vSTW, rtxt('a', aRAW(t, m, r), 4), 1024 * r), 'dsw',
                    reads=V(vSTW) + A(aRAW(t, m, r), 4), writes=['STG']))
    for sp in range(2):
        for tp in range(2):
            d = aXF(0, 2 * t + tp, 2 * m + sp)
            o.append(Op("ds_read_b128 %s, v%d offset:%d" % (rtxt('a', d, 4), vSTR[sp], 2048 * tp), 'dsr',
                        reads=V(vSTR[sp]) + ['STG'], writes=A(d, 4)))
    return o

def vop(text, rd, wr, kind='valu'): return Op(text, kind, rd, wr)

def cross_reduce(o, r, opn, tmp, post):
    a_, b_, c_, d_ = r
    o.append(vop("v_permlane16_swap_b32 v%d, v%d" % (a_, b_), V(a_) + V(b_), V(a_) + V(b_), 'perm'))
    o.append(vop("v_permlane16_swap_b32 v%d, v%d" % (c_, d_), V(c_) + V(d_), V(c_) + V(d_), 'perm'))
    o.append(vop("%s v%d, v%d, v%d" % (opn, a_, a_, b_), V(a_) + V(b_), V(a_)))
    o.append(vop("%s v%d, v%d, v%d" % (opn, c_, c_, d_), V(c_) + V(d_), V(c_)))
    o.append(vop("v_permlane32_swap_b32 v%d, v%d" % (a_, c_), V(a_) + V(c_), V(a_) + V(c_), 'perm'))
    o.append(vop("%s v%d, v%d, v%d" % (opn, a_, a_, c_), V(a_) + V(c_), V(a_)))
    post(a_)
    o.append(vop("v_mov_b32 v%d, v%d" % (c_, a_), V(a_), V(c_)))
    o.append(vop("v_permlane32_swap_b32 v%d, v%d" % (a_, c_), V(a_) + V(c_), V(a_) + V(c_), 'perm'))
    o.append(vop("v_mov_b32 v%d, v%d" % (b_, a_), V(a_), V(b_)))
    o.append(vop("v_mov_b32 v%d, v%d" % (d_, c_), V(c_), V(d_)))
    o.append(vop("v_permlane16_swap_b32 v%d, v%d" % (a_, b_), V(a_) + V(b_), V(a_) + V(b_), 'perm'))
    o.append(vop("v_permlane16_swap_b32 v%d, v%d" % (c_, d_), V(c_) + V(d_), V(c_) + V(d_), 'perm'))

def softmax():
    o = []
    for tb in range(4):
        e = [vS(0, tb) + i for i in range(16)]; m = vMX[tb]
        o.append(vop("v_max3_f32 v%d, v%d, v%d, v%d" % (m, e[0], e[1], e[2]), V(e[0]) + V(e[1]) + V(e[2]), V(m)))
        for i in range(3, 15, 2):
            o.append(vop("v_max3_f32 v%d, v%d, v%d, v%d" % (m, m, e[i], e[i + 1]), V(m) + V(e[i]) + V(e[i + 1]), V(m)))
        o.append(vop("v_max_f32 v%d, v%d, v%d" % (m, m, e[15]), V(m) + V(e[15]), V(m)))
    cross_reduce(o, vMX, "v_max_f32", vTM, lambda z: o.append(vop("v_mul_f32 v%d, s%d, v%d" % (z, sKAP, z), V(z) + S(sKAP), V(z))))
    for tb in range(4):
        e = [vS(0, tb) + i for i in range(16)]; m = vMX[tb]; l = vSM[tb]
        for i in range(16):
            o.append(vop("v_fma_f32 v%d, v%d, s%d, -v%d" % (e[i], e[i], sKAP, m), V(e[i]) + V(m) + S(sKAP), V(e[i])))
            o.append(vop("v_exp_f32 v%d, v%d" % (e[i], e[i]), V(e[i]), V(e[i]), 'trans'))
            if i == 1: o.append(vop("v_add_f32 v%d, v%d, v%d" % (l, e[0], e[1]), V(e[0]) + V(e[1]), V(l)))
            elif i > 1: o.append(vop("v_add_f32 v%d, v%d, v%d" % (l, l, e[i]), V(l) + V(e[i]), V(l)))
    cross_reduce(o, vSM, "v_add_f32", vT2, lambda z: o.append(vop("v_rcp_f32 v%d, v%d" % (z, z), V(z), V(z), 'trans')))
    for tb in range(4):
        base = vS(0, tb); l = vSM[tb]
        for j in range(8):
            o.append(vop("v_mul_f32 v%d, v%d, v%d" % (base + 2 * j, base + 2 * j, l), V(base + 2 * j) + V(l), V(base + 2 * j)))
            o.append(vop("v_mul_f32 v%d, v%d, v%d" % (base + 2 * j + 1, base + 2 * j + 1, l), V(base + 2 * j + 1) + V(l), V(base + 2 * j + 1)))
            o.append(cvt(vP(tb, 0) + j, base + 2 * j, base + 2 * j + 1))
    return o

class Builder:
    def __init__(self, cfg, own, ldg, koff, toff, par):
        self.cfg = cfg; self.ops = []; self.nm = 0; self.pending = None
        self.own = own; self.ldg = ldg; self.koff = koff; self.toff = toff; self.par = par
        self.wuse = None; self.first = {}; self.last = {}; self.nw = 0
        ev = []
        for j in range(12):
            tau = int(cfg.ld0 + j * cfg.ldstep)
            if tau >= NM: ev.append((tau - NM, 1 - par, j, 1))
        ev.append((NM * 2, None, None, None))
        self.ev1 = ev
        self.ev2 = [(int(cfg.ld0 + j * cfg.ldstep), par, j, 2) for j in range(12) if int(cfg.ld0 + j * cfg.ldstep) < NM]
        self.bumped = False
    def T(self, tau): return max(0, (tau + self.toff)) * P
    def add(self, o, grp=None):
        o.grp = grp or self.own; self.ops.append(o); return o
    def pair(self, tau, par, j):
        tb, m = XPAIRS[j]
        for s in (2 * m, 2 * m + 1):
            self.add(xload(par, tb, s, self.cfg, earliest=self.T(tau), deadline=self.T(tau + 6)), self.ldg)
    def addm(self, o):
        cfg = self.cfg
        while self.ev1[0][0] <= self.nm:
            tau, par, j, _ = self.ev1.pop(0); self.pair(tau, par, j)
        if len(self.ev1) == 1 and not self.bumped:
            self.bumped = True
            for rho in range(0, 8, 2):
                self.add(Op("s_add_u32 s%d, s%d, %d" % (sLD + rho, sLD + rho, DELTA), 'salu', S(sLD + rho), S(sLD + rho) + ['scc']))
        while self.ev2 and self.ev2[0][0] <= self.nm:
            tau, par, j, _ = self.ev2.pop(0); self.pair(tau, par, j)
        if self.wuse is not None:
            while self.nw < 144 and self.wuse[self.nw] - cfg.wlead <= self.nm:
                k = self.nw
                self.add(wread(self.koff + k, earliest=self.T(self.wuse[k] - cfg.wlead), deadline=self.T(self.wuse[k]) - 150)); self.nw += 1
        self.nm += 1; return self.add(o)
    def w_for(self, k):
        if k not in self.first: self.first[k] = self.nm
        self.last[k] = self.nm
    def run_pending(self):
        if self.pending is not None:
            p = self.pending; self.pending = None; p()
    def g3(self, u):
        for tb in range(4):
            for kb in range(4):
                self.addm(mfma(vS(kb, tb), 'a', aXF(self.par, kb, u), 'v', vYB(tb), first=(u == 0), tag="G3 u%d" % u))
        if u == 5:
            for o in softmax(): self.add(o)
    def g1(self, cb):
        hh = cb & 1
        for s in range(6):
            k = 6 * cb + s
            for tb in range(4):
                self.w_for(k)
                self.addm(mfma(vACC(hh, tb), 'a', aWR(k), 'a', aXF(self.par, tb, s), first=(s == 0), tag="G1 cb%d s%d" % (cb, s)))
            if s == 2: self.run_pending()
        for tb in range(4):
            for j in range(2):
                self.add(cvt(vYB(tb) + 2 * hh + j, vACC(hh, tb) + 2 * j, vACC(hh, tb) + 2 * j + 1))
        if hh == 1: self.pending = (lambda u=cb // 2: self.g3(u))
    def g2(self, cb):
        st = cb & 1
        for s in range(6):
            k = 72 + 6 * cb + s
            for kb in range(4):
                self.w_for(k)
                self.addm(mfma(vACC(st, kb), 'a', aXF(self.par, kb, s), 'a', aWR(k), first=(s == 0), tag="G2 cb%d s%d" % (cb, s)))
            if s == 2: self.run_pending()
        for v in range(2):
            for j in range(4):
                src = vACC(st, 2 * v + j // 2) + 2 * (j % 2)
                self.add(cvt(vVB(cb, v) + j, src, src + 1))
    def store(self, m, tb, r, tau, prev):
        cfg = self.cfg
        d = vH(m, tb) + 2 * r
        srd, row = (sOUTP, sSTP) if prev else (sOUT, sST)
        return Op("buffer_store_dwordx2 %s, v%d, s[%d:%d], s%d offen offset:%d%s" % (rtxt('v', d, 2), vSTO, srd, srd + 3, row + 2 * tb, r * 384 + m * 128, cfg.stflag), 'vst1',
                  reads=V(d, 2) + V(vSTO) + S(srd, 4) + S(row + 2 * tb), earliest=self.T(tau), deadline=self.T(tau + 6))
    def g4(self, m):
        cfg = self.cfg; j = 0
        for tb in range(4):
            st = (tb + cfg.oset0) % cfg.nosets
            for v in range(2):
                for q in range(4):
                    self.addm(mfma(vO(st, q), 'v', vP(tb, v), 'v', vVB(4 * m + q, v), first=(v == 0), tag="G4 m%d tb%d" % (m, tb)))
            for r in range(4):
                self.add(cvt(vH(m, tb) + 2 * r, vO(st, 0) + r, vO(st, 1) + r))
                self.add(cvt(vH(m, tb) + 2 * r + 1, vO(st, 2) + r, vO(st, 3) + r))
        for tb in range(4):
            for r in range(4):
                tau = int(cfg.st0[m] + j * cfg.ststep[m]); j += 1
                late = tau >= NM + cfg.R
                self.add(self.store(m, tb, r, tau, late and self.own == 'prev'), 'late' if late else None)
    def window(self):
        for cb in range(12): self.g1(cb)
        for cb in range(12): self.g2(cb)
        for m in range(3): self.g4(m)
        assert self.nm == NM and len(self.ev1) == 1 and not self.ev2, (self.nm, self.ev1, self.ev2)
        for rho in range(0, 8, 2):
            self.add(Op("s_mov_b32 s%d, s%d" % (sSTP + rho, sST + rho), 'salu', S(sST + rho), S(sSTP + rho)))
            self.add(Op("s_add_u32 s%d, s%d, %d" % (sST + rho, sST + rho, DELTA), 'salu', S(sST + rho), S(sST + rho) + ['scc'], earliest=self.T(NM)))
        self.add(Op("s_mov_b32 s%d, %d" % (sOUTP + 2, XBYTES), 'salu', [], S(sOUTP + 2)))
        return self.ops

def cut_at(ops, n):
    c = 0
    for i, o in enumerate(ops):
        if o.kind == 'mfma':
            if c == n: return i
            c += 1
    return len(ops)

def get_wuse(cfg):
    dry = Builder(cfg, 'cur', 'ld1', 0, -cfg.R, 0); dry.window()
    return dry, [dry.first[k] for k in range(144)]

def dma_blk(blk):
    ops = [Op("s_add_u32 s61, s60, %d" % (blk * 12288), 'salu', S(60), S(61) + ['scc']),
           Op("s_mov_b32 m0, s61", 'salu', S(61), ['m0'])]
    for j in range(3):
        ops.append(Op("buffer_load_dwordx4 v1, s[52:55], s61 offen offset:%d lds" % (j * 1024), 'dma',
                      V(1) + S(61) + ['m0', 'DORD'], ['DORD'] + ([('IMG', blk)] if j == 2 else [])))
    return ops

def head_lists(cfg):
    dry, wuse = get_wuse(cfg)
    if cfg.stage0: xl = [xload_c(t, m, r, cfg) for m in range(3) for t in range(2) for r in range(4)]
    else: xl = [xload(0, tb, s, cfg) for (tb, m) in XPAIRS for s in (2 * m, 2 * m + 1)]
    pre = dma_blk(0) + xl
    for rho in range(0, 8, 2):
        pre.append(Op("s_add_u32 s%d, s%d, %d" % (sLD + rho, sLD + rho, DELTA), 'salu', S(sLD + rho), S(sLD + rho) + ['scc']))
    for blk in range(1, cfg.hd_pre): pre += dma_blk(blk)
    B = Builder(cfg, 'next', 'ld2', 0, 0, 0); B.wuse = wuse
    early = [j for j in range(12) if int(cfg.ld0 + j * cfg.ldstep) < NM]
    w = B.window(); w = w[:cut_at(w, cfg.R)]
    ex = []
    for j in early:
        tb, m = XPAIRS[j]
        for s in (2 * m, 2 * m + 1):
            o = xload(1, tb, s, cfg); o.grp = 'ld2'; ex.append(o)
    w = ex + w
    ops = []
    if cfg.stage0:
        for m in range(3):
            for t in range(2): ops += staging(t, m)
    q = 0
    for blk in range(cfg.hd_pre, 12):
        tau = cfg.hd_m[blk] if blk < 6 else (cfg.hd_n0 + (blk - 6) * cfg.hd_nstep)
        for j in range(3):
            reg = (128 + 4 * q) if q < 20 else (224 + 4 * (q - 20)); q += 1
            off = blk * 12288 + j * 1024
            ld = Op("buffer_load_dwordx4 %s, v18, s[52:55], s61 offen offset:%d" % (rtxt('v', reg, 4), off % 4096), 'vld',
                    V(18) + S(52, 4) + S(61), V(reg, 4), deadline=max(0, tau - cfg.hd_lead + 4) * P)
            ld.lat = cfg.hd_lead * P
            so = Op("s_mov_b32 s61, %d" % (off - off % 4096), 'salu', [], S(61), deadline=ld.deadline - 8)
            va, o2 = (18, off) if blk < 6 else (19, off - 73728)
            wr = Op("ds_write_b128 v%d, %s offset:%d" % (va, rtxt('v', reg, 4), o2), 'dsw', V(va) + V(reg, 4) + ['IORD'], ['IORD'] + ([('IMG', blk)] if j == 2 else []),
                    deadline=(tau + 8) * P)
            so.emi = ld.emi = max(0, tau - cfg.hd_lead) + 2 * j; wr.emi = tau + 2 * j - 12
            ops += [so, ld, wr]
    i = 0
    for o in w:
        if o.grp == 'ld2':
            tau = int(cfg.hd_x0 + (i // 2) * 2 * cfg.hd_xstep); i += 1
            o.earliest = None; o.emi = tau; o.deadline = (tau + 6) * P
    bars = {}
    for blk in range(12):
        tb = max(0, wuse[12 * blk] - cfg.wlead - 4) * P
        bars[blk] = Op("s_barrier", 'bar', [('IMG', blk)], [('BAR', blk)], deadline=tb + 32)
        bars[blk].emi = tb // P
    seen = set()
    for o in w:
        if o.kind == 'dsr' and o.tag.startswith("W"):
            blk = int(o.tag[1:]) // 12
            if blk not in seen: seen.add(blk); ops.append(bars[blk])
            o.reads.append(('BAR', blk))
        ops.append(o)
    fin = [Op("s_barrier", 'bar', [('IMG', 11)], [])]
    return pre, ops, fin

def body(cfg, par):
    R = cfg.R
    dry, wuse = get_wuse(cfg)
    for k in range(144):
        prev_last = dry.last[k - 16] if k >= 16 else dry.last[k + 128] - NM
        assert prev_last < wuse[k] - cfg.wlead, (k, prev_last, wuse[k])
    def mk(*a):
        b = Builder(cfg, *a); b.wuse = wuse; return b.window()
    prv = mk('prev', 'ldx', 0, -R - NM, 1 - par)
    cur = mk('cur', 'ld1', 0, -R, par)
    nxt = mk('next', 'ld2', 144, NM - R, 1 - par)
    late = [o for o in prv if o.grp == 'late']
    for o in late: o.grp = 'prev'
    latecur = [o for o in cur if o.grp == 'late']
    body_ops = late + [o for o in cur[cut_at(cur, R):] if o.grp != 'late'] + nxt[:cut_at(nxt, R)]
    return body_ops, latecur

SCHED = dict(mfma_period=P, dsw_gap=56, vst1_gap=24, short=True)

def main_kernel(cfg):
    L = []
    a = L.append
    K = NAME + "_kernel"
    a(".globl %s\n.p2align 8\n.type %s,@function\n%s:" % (K, K, K))
    a("""    s_cmp_ge_u32 s2, 256
    s_cbranch_scc1 L_end
    s_load_dwordx2 s[4:5], s[0:1], 0
    s_load_dwordx2 s[6:7], s[0:1], 24
    s_load_dwordx2 s[50:51], s[0:1], 40
    v_lshrrev_b32 v16, 6, v0
    v_and_b32 v0, 63, v0
    s_nop 0
    v_readfirstlane_b32 s49, v16            ; wave
    v_lshlrev_b32 v1, 4, v0                 ; lane*16
    v_add_u32 v2, 0x10000, v1
    v_add_u32 v3, 0x20000, v1
    s_nop 1
    v_and_b32 v16, 15, v0                   ; i
    v_lshrrev_b32 v17, 3, v16
    v_mul_u32_u24 v17, 196608, v17          ; (i>>3)*row
    v_and_b32 v18, 7, v16
    v_mul_u32_u24 v18, 384, v18
    v_lshrrev_b32 v16, 4, v0                ; g
    v_lshlrev_b32 v16, 4, v16
    v_add3_u32 v9, v16, v17, v18
    s_lshl_b32 s52, s49, 12
    s_add_u32 s52, s52, 147456
    v_add_u32 v4, s52, v1
    v_and_b32 v16, 15, v0
    v_lshrrev_b32 v17, 4, v0
    v_and_b32 v18, 7, v16
    v_xor_b32 v18, v18, v17
    v_lshlrev_b32 v18, 4, v18
    v_lshl_add_u32 v18, v16, 7, v18
    v_add_u32 v5, s52, v18
    v_xor_b32 v6, 64, v5
    v_lshrrev_b32 v16, 3, v0
    v_and_b32 v17, 7, v0
    v_xor_b32 v17, v17, v16
    v_lshlrev_b32 v17, 4, v17
    v_mul_u32_u24 v16, 384, v16
    v_add_u32 v10, v16, v17
    v_lshrrev_b32 v16, 5, v0                ; g>>1
    v_mul_u32_u24 v16, 196608, v16
    v_lshrrev_b32 v17, 4, v0
    v_and_b32 v17, 1, v17
    v_mul_u32_u24 v17, 1536, v17
    v_and_b32 v18, 15, v0
    v_lshlrev_b32 v18, 3, v18
    v_add3_u32 v11, v16, v17, v18
    s_lshr_b32 s53, s2, 4
    s_mul_i32 s53, s53, 1572864
    s_and_b32 s54, s2, 15
    s_lshl_b32 s54, s54, 2
    s_add_u32 s54, s54, s49
    s_mul_i32 s54, s54, 3072
    s_add_u32 s53, s53, s54""")
    for rho in range(8):
        a("    s_add_u32 s%d, s53, %d" % (sLD + rho, rho * ROWB))
        a("    s_add_u32 s%d, s53, %d" % (sST + rho, rho * ROWB))
    a("    s_waitcnt lgkmcnt(0)")
    a("    s_mov_b32 s8, s4\n    s_mov_b32 s9, s5\n    s_mov_b32 s10, %d\n    s_mov_b32 s11, 0x00020000" % XBYTES)
    a("    s_mov_b32 s12, s6\n    s_mov_b32 s13, s7\n    s_mov_b32 s14, %d\n    s_mov_b32 s15, 0x00020000" % XBYTES)
    a("    s_mov_b32 s%d, %s" % (sKAP, f32hex(KAPPA)))
    if cfg.stamp:
        a("    s_add_u32 s68, s50, 0x100000\n    s_addc_u32 s69, s51, 0\n    s_mov_b32 s70, 0x200000\n    s_mov_b32 s71, 0x00020000")
        a("    s_lshl_b32 s98, s2, 2\n    s_add_u32 s98, s98, s49\n    s_lshl_b32 s98, s98, 7")
        stamp(a, 0); stamp(a, 8, True)
    a("    s_mov_b32 s52, s50\n    s_mov_b32 s53, s51\n    s_mov_b32 s54, %d\n    s_mov_b32 s55, 0x00020000" % WIMG)
    a("    s_mul_i32 s60, s49, 3072")
    a("    v_add_u32 v18, s60, v1")
    a("    v_add_u32 v19, 73728, v18")
    pre, hops, hfin = head_lists(cfg)
    horder, hstats = schedule(hops, **SCHED)
    brief = lambda st_: {k_: v for k_, v in st_.items() if k_ != 'late'}
    sys.stderr.write("head schedule: %s\n" % brief(hstats))
    post = [Op("s_mov_b32 s16, s12", 'salu', S(12), S(16)), Op("s_mov_b32 s17, s13", 'salu', S(13), S(17)),
            Op("s_mov_b32 s18, 0", 'salu', [], S(18)), Op("s_mov_b32 s19, 0x00020000", 'salu', [], S(19))]
    post += [Op("s_mov_b32 s%d, 0" % (sSTP + rho), 'salu', [], S(sSTP + rho)) for rho in range(0, 8, 2)]
    headseq = pre + horder + hfin + post
    parts = {}
    for par in range(2):
        ops, latecur = body(cfg, par)
        order, stats = schedule(ops, **SCHED)
        sys.stderr.write("schedule par%d: %s late=%s ops=%d\n" % (par, brief(stats), stats.get('late', [])[:4], len(ops)))
        cut = cut_at(order, cfg.exit_tau - cfg.R)
        parts[(par, 1)] = order[:cut]; parts[(par, 2)] = order[cut:]
        period = stats['end']
        if par == 1:
            after = set(id(o) for o in order[cut:])
            def clone(o):
                c = Op(o.text, o.kind, o.reads, o.writes, tag=o.tag, creads=o.creads, passes=o.passes); c.grp = o.grp
                return c
            tl = [clone(o) for o in ops if id(o) in after and o.grp in ('cur', 'prev') and o.kind != 'salu'] + [clone(o) for o in latecur]
            for o in tl:
                if o.kind == 'vst1': o.deadline = 0
            S2 = dict(SCHED); S2['vst1_gap'] = 12
            tailops, tstats = schedule(tl, **S2)
            sys.stderr.write("tail schedule: %s\n" % brief(tstats))
            for o in tailops: o.t = None
    tcut = parts[(0, 2)][0].t
    seq = [(0, 1), (0, 2), (1, 1), (1, 2), (0, 1), (0, 2), (1, 1)]
    def run(reqs, collect):
        s_ = State(); hl = finalize(headseq, s_, vm_slack=10**9); s_.time = 0
        out = {}
        tb = 0
        for n, key in enumerate(seq):
            c = [] if collect is not None else None
            ln = finalize(parts[key], s_, tbase=tb, reqs=(reqs.get(key) if reqs else None), collect=c)
            if collect is not None: collect.setdefault(key, []).append(c)
            out.setdefault(key, []).append(ln)
            s_.pos += 3 if key == (1, 1) else (1 if key == (1, 2) else 0)
            if key[1] == 2: tb += period + 20
        return s_, hl, out
    reqs = None
    for it in range(4):
        col = {}
        s_, head_lines, out = run(reqs, col)
        new_reqs = {}
        for key, lst in col.items():
            r = lst[0]
            for x in lst[1:]: r = merge_reqs(r, x)
            new_reqs[key] = r
        reqs = new_reqs
    s_, head_lines, out = run(reqs, None)
    for key, lst in out.items():
        assert all(x == lst[0] for x in lst), ("unstable", key)
    tail_lines = finalize(tailops, s_, merge_slack=10**9, vm_slack=10**9)
    if cfg.stamp:
        stamp(a, 1)
        import re as _re
        marks = [(r"s_barrier", 72), (r"v_mfma", 74), (r"G1 cb2 s0", 76), (r"G1 cb4 s0", 78), (r"G1 cb6 s0", 80), (r"G1 cb8 s0", 82), (r"G1 cb10 s0", 84)]
        hl = []; seen = set()
        for l in head_lines:
            for pat, sr in marks:
                if sr not in seen and _re.search(pat, l):
                    hl.append("    s_memtime s[%d:%d]" % (sr, sr + 1)); seen.add(sr)
            hl.append(l)
        head_lines = hl
    L += head_lines
    if cfg.stamp:
        a("    s_memtime s[86:87]")
        a("    s_waitcnt lgkmcnt(0)")
        a("    s_add_u32 s66, s98, 0x40000")
        a("    v_mov_b32 v28, s66")
        a("    s_mov_b64 exec, 1")
        for i in range(8):
            a("    v_mov_b32 v27, s%d" % (72 + 2 * i))
            a("    buffer_store_dword v27, v28, s[68:71], 0 offen offset:%d" % (4 * i))
        a("    s_mov_b64 exec, -1")
        stamp(a, 10)
    a("    s_mov_b32 s%d, 0" % sCNT)
    if cfg.stamp: stamp(a, 2)
    a("    .p2align 6")
    a("L_loop:")
    def itstamp(off):
        a("    s_memtime s[62:63]")
        a("    s_waitcnt lgkmcnt(0)")
        a("    v_mov_b32 v26, s62\n    v_mov_b32 v27, s63")
        a("    s_lshl_b32 s66, s48, 4")
        a("    s_add_u32 s66, s66, s98")
        a("    v_mov_b32 v28, s66")
        a("    s_mov_b64 exec, 1")
        a("    buffer_store_dwordx2 v[26:27], v28, s[68:71], 0 offen offset:%d" % off)
        a("    s_mov_b64 exec, -1")
    L += out[(0, 1)][0]
    L += out[(0, 2)][0]
    if cfg.stamp: itstamp(24)
    L += out[(1, 1)][0]
    a("    s_cmp_eq_u32 s%d, 1" % sCNT)
    a("    s_cbranch_scc1 L_tail")
    a("    s_add_u32 s%d, s%d, 1" % (sCNT, sCNT))
    L += out[(1, 2)][0]
    if cfg.stamp:
        a("    s_sub_u32 s48, s48, 1")
        itstamp(32)
        a("    s_add_u32 s48, s48, 1")
    a("    s_branch L_loop")
    a("L_tail:")
    if cfg.stamp: stamp(a, 6)
    L += tail_lines
    if cfg.stamp:
        a("    s_waitcnt vmcnt(0)")
        stamp(a, 7); stamp(a, 9, True)
    p1_lines = out[(0, 1)][0] + out[(0, 2)][0]; p2_lines = out[(1, 1)][0] + out[(1, 2)][0]
    a("L_end:")
    a("    s_endpgm")
    allb = p1_lines + p2_lines
    nw = sum(1 for l in allb if 's_waitcnt' in l); nn = sum(1 for l in allb if 's_nop' in l)
    sys.stderr.write("body lines=%d waits=%d nops=%d head=%d tail=%d\n" % (len(allb), nw, nn, len(head_lines), len(tail_lines)))
    return "\n".join(L) + "\n"

MAIN_DESC = """.amdhsa_kernel %s_kernel
  .amdhsa_next_free_vgpr 512
  .amdhsa_next_free_sgpr 100
  .amdhsa_accum_offset 256
  .amdhsa_group_segment_fixed_size 0
  .amdhsa_kernarg_size 48
  .amdhsa_user_sgpr_count 2
  .amdhsa_user_sgpr_kernarg_segment_ptr 1
  .amdhsa_system_sgpr_workgroup_id_x 1
.end_amdhsa_kernel
""" % NAME

def generate(cfg):
    s = HEADER
    s += "; @launch kernel=swin_prep_kernel grid=(144,1,1) block=(64,1,1) lds=6144\n"
    s += "; @launch kernel=%s_kernel grid=(256,1,1) block=(256,1,1) lds=163840\n" % NAME
    s += '.amdgcn_target "amdgcn-amd-amdhsa--gfx950"\n.text\n'
    s += prep_kernel(cfg.stamp)
    s += main_kernel(cfg)
    s += '.section .rodata,"a"\n.p2align 6\n' + PREP_DESC + ".p2align 6\n" + MAIN_DESC
    return s

if __name__ == "__main__":
    ap = argparse.ArgumentParser()
    ap.add_argument("-o", default="/code/%s.s" % NAME)
    ap.add_argument("--stamp", action="store_true")
    ap.add_argument("--set", action="append", default=[])
    args = ap.parse_args()
    cfg = Cfg(); cfg.stamp = args.stamp
    for kv in args.set:
        k, v = kv.split("="); setattr(cfg, k, eval(v))
    open(args.o, "w").write(generate(cfg))
```

```python
import sys
src, dst, mode, T = sys.argv[1], sys.argv[2], sys.argv[3], float(sys.argv[4])
s = open(src).read()
ticks = int(T * 100)
s = s.replace("    s_load_dwordx2 s[8:9], s[0:1], 40\n", "    s_load_dwordx2 s[8:9], s[0:1], 40\n    s_memrealtime s[36:37]\n", 1)
s = s.replace("L_prep_end:\n", """    s_cmp_lg_u32 s2, 0
    s_cbranch_scc1 L_prep_end
    s_add_u32 s24, s8, 0x200000
    s_addc_u32 s25, s9, 0
    s_mov_b32 s26, 64
    v_mov_b32 v20, s36
    v_mov_b32 v21, s37
    v_mov_b32 v24, 0
    s_mov_b64 exec, 1
    buffer_store_dwordx2 v[20:21], v24, s[24:27], 0 offen
L_prep_end:
""", 1)
def spin(lbl, base):
    return """    s_mov_b32 s94, 0
%s:
    s_memrealtime s[90:91]
    s_waitcnt lgkmcnt(0)
    s_sub_u32 s90, s90, s%d
    s_add_u32 s94, s94, 1
    s_cmp_gt_u32 s94, 200000
    s_cbranch_scc1 %s_x
    s_cmp_lt_u32 s90, %d
    s_cbranch_scc1 %s
%s_x:
""" % (lbl, base, lbl, ticks, lbl, lbl)
ldt0 = """    s_load_dwordx2 s[92:93], s[0:1], 40
    s_waitcnt lgkmcnt(0)
    s_add_u32 s92, s92, 0x200000
    s_addc_u32 s93, s93, 0
    s_load_dwordx2 s[88:89], s[92:93], 0
    s_waitcnt lgkmcnt(0)
"""
key = "    s_cbranch_scc1 L_end\n"
assert key in s
if mode == "end0":
    s = s.replace("L_end:\n", "    s_waitcnt vmcnt(0)\n" + ldt0 + spin("L_spin", 88) + "L_end:\n", 1)
elif mode == "endm":
    s = s.replace(key, key + "    s_memrealtime s[88:89]\n", 1)
    s = s.replace("L_end:\n", "    s_waitcnt vmcnt(0)\n" + spin("L_spin", 88) + "L_end:\n", 1)
elif mode == "beg0":
    s = s.replace(key, key + ldt0 + spin("L_spin", 88), 1)
open(dst, "w").write(s)
```

```python
import sys
src, dst, metric, wgsel = sys.argv[1:5]
s = open(src).read()
key = "    s_cbranch_scc1 L_end\n"
s = s.replace(key, key + "    s_memrealtime s[88:89]\n    s_memtime s[80:81]\n", 1)
st = lambda a, b: "    s_memrealtime s[%d:%d]\n    s_memtime s[%d:%d]\n    s_waitcnt lgkmcnt(0)\n" % (a, a + 1, b, b + 1)
s = s.replace("    .p2align 6\nL_loop:\n", st(86, 78) + "    .p2align 6\nL_loop:\n", 1)
s = s.replace("L_tail:\n", "L_tail:\n" + st(84, 76), 1)
m = {"zero": "    s_mov_b32 s95, 0\n", "head": "    s_sub_u32 s95, s86, s88\n", "tailstart": "    s_sub_u32 s95, s84, s88\n", "end": "    s_sub_u32 s95, s82, s88\n",
     "headc": "    s_sub_u32 s95, s78, s80\n    s_lshr_b32 s95, s95, 4\n", "loopc": "    s_sub_u32 s95, s76, s78\n    s_lshr_b32 s95, s95, 4\n",
     "tailc": "    s_sub_u32 s95, s74, s76\n    s_lshr_b32 s95, s95, 4\n", "loop": "    s_sub_u32 s95, s84, s86\n", "tail": "    s_sub_u32 s95, s82, s84\n"}[metric]
if wgsel != "all":
    m += "    s_cmp_eq_u32 s2, %s\n    s_cselect_b32 s95, s95, 0\n" % wgsel
spin = "    s_waitcnt vmcnt(0)\n" + st(82, 74) + m + """    s_min_u32 s95, s95, 10000
    s_add_u32 s95, s95, 6000
    s_mov_b32 s94, 0
L_spin:
    s_memrealtime s[90:91]
    s_waitcnt lgkmcnt(0)
    s_sub_u32 s90, s90, s88
    s_add_u32 s94, s94, 1
    s_cmp_gt_u32 s94, 200000
    s_cbranch_scc1 L_spin_x
    s_cmp_lt_u32 s90, s95
    s_cbranch_scc1 L_spin
L_spin_x:
"""
s = s.replace("L_end:\n", spin + "L_end:\n", 1)
open(dst, "w").write(s)
```

```python
import sys
src, dst, sel = sys.argv[1:4]
sel = int(sel)
usemax = len(sys.argv) > 4
s = open(src).read()
key = "    s_cbranch_scc1 L_end\n"
s = s.replace(key, key + "    s_memrealtime s[88:89]\n    s_memtime s[80:81]\n", 1)
st = lambda a, b: "    s_memrealtime s[%d:%d]\n    s_memtime s[%d:%d]\n    s_waitcnt lgkmcnt(0)\n" % (a, a + 1, b, b + 1)
s = s.replace("    .p2align 6\nL_loop:\n", st(86, 78) + "    .p2align 6\nL_loop:\n", 1)
s = s.replace("L_tail:\n", "L_tail:\n" + st(84, 76), 1)
L = ["    s_waitcnt vmcnt(0)\n" + st(82, 74)]
a = lambda x: L.append(x + "\n")
a("    s_load_dwordx2 s[64:65], s[0:1], 32\n    s_waitcnt lgkmcnt(0)\n    s_mov_b32 s66, 256\n    s_mov_b32 s67, 0x00020000")
ms = [(86, 88, 0), (84, 86, 0), (82, 84, 0), (82, 88, 0), (78, 80, 4), (76, 78, 4), (74, 76, 4)]
a("    s_mov_b64 exec, 1\n    v_mov_b32 v1, 0")
for i, (x, y, sh) in enumerate(ms):
    a("    s_sub_u32 s95, s%d, s%d" % (x, y))
    if sh: a("    s_lshr_b32 s95, s95, %d" % sh)
    a("    v_mov_b32 v%d, s95" % (2 + i))
    a("    buffer_atomic_add v%d, v1, s[64:67], 0 offen offset:%d" % (2 + i, 4 * i))
    a("    buffer_atomic_umax v%d, v1, s[64:67], 0 offen offset:%d" % (2 + i, 32 + 4 * i))
a("    s_waitcnt vmcnt(0)")
def spin(lbl, lim):
    a("""    s_mov_b32 s94, 0
%s:
    s_sleep 8
    s_memrealtime s[90:91]
    s_waitcnt lgkmcnt(0)
    s_sub_u32 s90, s90, s88
    s_add_u32 s94, s94, 1
    s_cmp_gt_u32 s94, 100000
    s_cbranch_scc1 %s_x
    s_cmp_lt_u32 s90, %s
    s_cbranch_scc1 %s
%s_x:""" % (lbl, lbl, lim, lbl, lbl))
a("    s_or_b32 s95, s2, s49\n    s_cmp_lg_u32 s95, 0\n    s_cbranch_scc1 L_end")
spin("L_spin1", "5800")
if sel >= 0:
    a("    buffer_load_dword v2, v1, s[64:67], 0 offen offset:%d sc0 sc1\n    s_waitcnt vmcnt(0)\n    v_readfirstlane_b32 s95, v2\n    s_nop 3" % (4 * sel + (32 if usemax else 0)))
    if not usemax: a("    s_lshr_b32 s95, s95, 10")
else:
    a("    s_mov_b32 s95, 0")
a("    s_min_u32 s95, s95, 10000\n    s_add_u32 s95, s95, 6000")
spin("L_spin2", "s95")
s = s.replace("L_end:\n", "".join(L) + "L_end:\n", 1)
open(dst, "w").write(s)
```

```python
import sys
src, dst, sel = sys.argv[1:4]
sel = int(sel)
usemax = len(sys.argv) > 4
s = open(src).read()
key = "    s_cbranch_scc1 L_end\n"
s = s.replace(key, key + "    s_memrealtime s[88:89]\n    s_memtime s[80:81]\n", 1)
st = lambda a, b: "    s_memrealtime s[%d:%d]\n    s_memtime s[%d:%d]\n    s_waitcnt lgkmcnt(0)\n" % (a, a + 1, b, b + 1)
s = s.replace("    .p2align 6\nL_loop:\n", st(86, 78) + "    .p2align 6\nL_loop:\n", 1)
s = s.replace("L_tail:\n", "L_tail:\n" + st(84, 76), 1)
L = ["    s_waitcnt vmcnt(0)\n" + st(82, 74)]
a = lambda x: L.append(x + "\n")
a("    s_load_dwordx2 s[64:65], s[0:1], 40\n    s_load_dwordx2 s[68:69], s[0:1], 32\n    s_waitcnt lgkmcnt(0)\n    s_add_u32 s64, s64, 0x100000\n    s_addc_u32 s65, s65, 0\n    s_mov_b32 s66, 0x10000\n    s_mov_b32 s67, 0x00020000\n    s_mov_b32 s70, 256\n    s_mov_b32 s71, 0x00020000")
ms = [(86, 88, 0), (84, 86, 0), (82, 84, 0), (82, 88, 0), (78, 80, 4), (76, 78, 4), (74, 76, 4)]
a("    s_mov_b64 exec, 1\n    s_lshl_b32 s95, s2, 2\n    s_add_u32 s95, s95, s49\n    s_lshl_b32 s95, s95, 5\n    v_mov_b32 v1, s95")
for i, (x, y, sh) in enumerate(ms):
    a("    s_sub_u32 s95, s%d, s%d" % (x, y))
    if sh: a("    s_lshr_b32 s95, s95, %d" % sh)
    a("    v_mov_b32 v%d, s95" % (4 + i))
a("    v_mov_b32 v11, s82")
a("    buffer_store_dwordx4 v[4:7], v1, s[64:67], 0 offen sc0 sc1\n    buffer_store_dwordx4 v[8:11], v1, s[64:67], 0 offen offset:16 sc0 sc1")
a("    s_waitcnt vmcnt(0)\n    s_mov_b64 exec, -1")
def spin(lbl, lim):
    a("""    s_mov_b32 s94, 0
%s:
    s_sleep 8
    s_memrealtime s[90:91]
    s_waitcnt lgkmcnt(0)
    s_sub_u32 s90, s90, s88
    s_add_u32 s94, s94, 1
    s_cmp_gt_u32 s94, 100000
    s_cbranch_scc1 %s_x
    s_cmp_lt_u32 s90, %s
    s_cbranch_scc1 %s
%s_x:""" % (lbl, lbl, lim, lbl, lbl))
a("    s_or_b32 s95, s2, s49\n    s_cmp_lg_u32 s95, 0\n    s_cbranch_scc1 L_end")
spin("L_spin1", "6500")
a("    v_mbcnt_lo_u32_b32 v1, -1, 0\n    v_mbcnt_hi_u32_b32 v1, -1, v1\n    v_lshlrev_b32 v1, 5, v1")
for j in range(16):
    a("    s_mov_b32 s95, %d" % (j * 2048))
    a("    buffer_load_dwordx4 v[%d:%d], v1, s[64:67], s95 offen sc0 sc1" % (16 + 8 * j, 19 + 8 * j))
    a("    buffer_load_dwordx4 v[%d:%d], v1, s[64:67], s95 offen offset:16 sc0 sc1" % (20 + 8 * j, 23 + 8 * j))
a("    s_waitcnt vmcnt(0)")
for j in range(16): a("    v_subrev_u32 v%d, s88, v%d" % (23 + 8 * j, 23 + 8 * j))
for m in range(8):
    a("    v_mov_b32 v2, v%d\n    v_mov_b32 v3, v%d" % (16 + m, 16 + m))
    for j in range(1, 16):
        a("    v_add_u32 v2, v2, v%d\n    v_max_u32 v3, v3, v%d" % (16 + 8 * j + m, 16 + 8 * j + m))
    a("    s_mov_b32 s92, 0\n    s_mov_b32 s93, 0\n    s_nop 1")
    for l in range(64):
        a("    v_readlane_b32 s95, v2, %d\n    v_readlane_b32 s94, v3, %d\n    s_nop 0\n    s_add_u32 s92, s92, s95\n    s_max_u32 s93, s93, s94" % (l, l))
    a("    s_lshr_b32 s92, s92, 10\n    v_mov_b32 v%d, s92\n    v_mov_b32 v%d, s93" % (160 + m, 168 + m))
    if m == sel: a("    s_mov_b32 s96, s%d" % (93 if usemax else 92))
if sel < 0: a("    s_mov_b32 s96, 0")
a("    v_mov_b32 v1, 0\n    s_mov_b64 exec, 1")
for q in range(4): a("    buffer_store_dwordx4 v[%d:%d], v1, s[68:71], 0 offen offset:%d" % (160 + 4 * q, 163 + 4 * q, 16 * q))
a("    s_min_u32 s95, s96, 10000\n    s_add_u32 s95, s95, 7500")
spin("L_spin2", "s95")
s = s.replace("L_end:\n", "".join(L) + "L_end:\n", 1)
open(dst, "w").write(s)
```
